```python
import torch

def _softmax(x, axis=-1):
    return torch.softmax(x, dim=axis)
def _gelu(x):
    return torch.nn.functional.gelu(x, approximate="tanh")
def _silu(x):
    return torch.nn.functional.silu(x)
def _sigmoid(x):
    return torch.sigmoid(x)
def _layernorm(x, axis=-1, eps=1e-5):
    m = x.mean(dim=axis, keepdim=True)
    v = x.var(dim=axis, keepdim=True, unbiased=False)
    return (x - m) / torch.sqrt(v + eps)
def _scatter_add(tgt, idx, src, axis=0):
    return tgt.clone().index_add_(axis, idx, src)
def _segment_sum(src, seg, n):
    out = torch.zeros((n,) + src.shape[1:], dtype=src.dtype)
    return out.index_add_(0, seg, src)
def _pad(x, pw):
    flat = tuple(v for pair in reversed(pw) for v in pair)
    return torch.nn.functional.pad(x, flat)

kernel_name = 'standalone__w4a16_gemm_dequant__prompt'

def setup_inputs():

    _w = (lambda a: (lambda t: t.to(torch.bfloat16) if t.is_floating_point() else t)(torch.as_tensor(a)))
    B, S, D, F = 1, 2048, 1024, 3584
    G = -1 if -1 > 0 else D
    D = (D // G) * G
    ng = D // G
    qw = torch.randint(0, 16, (D, F)).to(torch.int32)
    return {
        "x": _w((lambda *s: torch.randn(*s, dtype=torch.bfloat16) * 0.05)(B, S, D)),
        "qw": _w(qw),
        "scales": _w(torch.abs((lambda *s: torch.randn(*s, dtype=torch.bfloat16) * 0.05)(ng, F)) + 0.01),
        "zeros": _w(torch.full((ng, F), 8.0, dtype=float)),
    }

def reference(x, qw, scales, zeros):
    B, S, D = x.shape
    ng, F = scales.shape
    G = D // ng
    s = (lambda x, n, axis: torch.repeat_interleave(x, n, dim=axis))(scales, G, axis=0)
    z = (lambda x, n, axis: torch.repeat_interleave(x, n, dim=axis))(zeros, G, axis=0)
    w = ((lambda x, dt: x.to(dt))(qw, x.dtype) - z) * s
    return x @ w
```

```python
KN = "standalone__w4a16_gemm_dequant__prompt_kernel"
HEADER = """; Kernarg layout for this problem (56 bytes, ptrs only, base s[0:1]):
"""
class Asm:
    def __init__(self):
        self.l = []
    def __call__(self, s=""):
        for x in s.split("\n"):
            x = x.strip()
            if not x: continue
            if x.endswith(":") or x.startswith("."):
                self.l.append(x)
            else:
                self.l.append("    " + x)
    def label(self, n): self.l.append(n + ":")
    def text(self): return "\n".join(self.l) + "\n"

def wrap(body, grid, block, lds, nvgpr, nsgpr, accum=None, name=KN, extra_kd=""):
    if accum is None: accum = (nvgpr + 3) // 4 * 4
    s = HEADER
    s += f"; @launch grid=({grid},1,1) block=({block},1,1) lds={lds}\n"
    s += '.amdgcn_target "amdgcn-amd-amdhsa--gfx950"\n.text\n'
    s += f".globl {name}\n.p2align 8\n.type {name},@function\n{name}:\n"
    s += body
    s += '.section .rodata,"a"\n.p2align 6\n'
    s += f".amdhsa_kernel {name}\n"
    s += f"  .amdhsa_next_free_vgpr {nvgpr}\n  .amdhsa_next_free_sgpr {nsgpr}\n  .amdhsa_accum_offset {accum}\n"
    s += "  .amdhsa_group_segment_fixed_size 0\n  .amdhsa_kernarg_size 56\n  .amdhsa_user_sgpr_count 2\n"
    s += "  .amdhsa_user_sgpr_kernarg_segment_ptr 1\n  .amdhsa_system_sgpr_workgroup_id_x 1\n"
    s += extra_kd
    s += ".end_amdhsa_kernel\n"
    return s
```

```python
import sys
from ab import *

M, N, K = 2048, 3584, 1024
BM, BN, BK = 256, 112, 64
NSTEP = K // BK
A_SLOT = BM * BK * 2
B_SLOT = BN * BK * 2
NA = 3
A_BASE = 0
B_BASE = NA * A_SLOT
DUMMY = B_BASE + 2 * B_SLOT
LDS = DUMMY + B_SLOT + 256

def gen(mapping="col", rot=(2, 1), ntA="", ntB="", stC="", stamps=False, bar_pos=28, prio=None):
    a = Asm()
    a(f"""
    s_cmp_ge_u32 s2, 256
    s_cbranch_scc1 L_end
    """)
    if stamps:
        a("s_memrealtime s[60:61]\ns_memtime s[64:65]")
    a(f"""
    s_load_dwordx4 s[4:7], s[0:1], 0
    s_load_dwordx4 s[16:19], s[0:1], 16
    s_load_dwordx2 s[20:21], s[0:1], 32
    """)
    if stamps:
        a("s_load_dwordx2 s[58:59], s[0:1], 48")
    a(f"""
    v_lshrrev_b32 v1, 6, v0     ; wave
    v_and_b32 v2, 63, v0        ; lane
    s_and_b32 s28, s2, 7
    v_readfirstlane_b32 s3, v1
    s_lshr_b32 s29, s2, 3     ; idx
    """)
    if mapping == "col":
        a(f"""
        s_and_b32 s30, s29, 7   ; mt
        s_lshr_b32 s31, s29, 3
        s_lshl_b32 s28, s28, 2
        s_add_u32 s31, s31, s28
        """)
    elif mapping == "2x4":
        a(f"""
        s_and_b32 s30, s28, 1
        s_lshl_b32 s30, s30, 2
        s_and_b32 s31, s29, 3
        s_add_u32 s30, s30, s31   ; mt
        s_lshr_b32 s28, s28, 1
        s_lshl_b32 s28, s28, 3
        s_lshr_b32 s31, s29, 2
        s_add_u32 s31, s31, s28   ; nt
        """)
    ca, cb = rot
    a(f"""
    s_mul_i32 s32, s30, {ca}
    s_mul_i32 s33, s31, {cb}
    s_add_u32 s32, s32, s33
    s_and_b32 s32, s32, 15      ; kidx
    s_cmp_ge_u32 s3, 4
    s_cbranch_scc1 L_prod
    """)
    ACC = 128
    FA = [16, 64]; FB = [32, 80]
    def acc(mi, t): return ACC + (mi * 7 + t) * 4
    a(f"""
    v_and_b32 v3, 15, v2          ; j = l&15
    v_lshrrev_b32 v4, 4, v2       ; g = l>>4
    v_and_b32 v5, 7, v2
    v_xor_b32 v5, v5, v4
    v_lshlrev_b32 v5, 4, v5
    v_lshlrev_b32 v6, 7, v3
    v_add_u32 v5, v5, v6
    s_lshl_b32 s34, s3, 13
    v_add_u32 v8, s34, v5
    v_xor_b32 v9, 64, v8
    v_add_u32 v10, {B_BASE}, v5
    v_xor_b32 v11, 64, v10
    """)
    for r in range(112):
        a(f"v_mov_b32 v{ACC+r}, 0")
    a(f"""
    s_lshl_b32 s34, s30, 8
    s_lshl_b32 s35, s3, 6
    s_add_u32 s34, s34, s35
    v_lshlrev_b32 v6, 2, v4
    v_add_u32 v6, s34, v6
    v_mul_u32_u24 v6, 7168, v6
    s_mul_i32 s35, s31, 224
    v_add_u32 v6, s35, v6
    v_lshlrev_b32 v7, 3, v3
    v_add_u32 v112, v6, v7        ; x2 piece
    v_lshlrev_b32 v7, 2, v3
    v_add3_u32 v113, v6, v7, 64
    v_add_u32 v113, 64, v113      ; +128
    v_lshlrev_b32 v7, 1, v3
    v_add_u32 v114, v6, v7
    v_add_u32 v114, 192, v114
    s_waitcnt lgkmcnt(0)
    s_mov_b32 s24, s20
    s_mov_b32 s25, s21
    s_mov_b32 s26, {M*N*2}
    s_mov_b32 s27, 0x00020000
    s_mov_b32 s36, 0
    s_mov_b32 s37, 0
    s_mov_b32 s38, {NSTEP-1}
    v_mov_b32 v12, v8
    v_mov_b32 v13, v9
    v_mov_b32 v14, v10
    v_mov_b32 v15, v11
    """)
    if prio is not None: a(f"s_setprio {prio}")
    def reads(f, va, vb):
        r = []
        r.append(f"ds_read_b128 v[{FA[f]}:{FA[f]+3}], v{va} offset:0")
        for t in range(7):
            r.append(f"ds_read_b128 v[{FB[f]+4*t}:{FB[f]+4*t+3}], v{vb} offset:{2048*t}")
        for mi in range(1, 4):
            r.append(f"ds_read_b128 v[{FA[f]+4*mi}:{FA[f]+4*mi+3}], v{va} offset:{2048*mi}")
        return r
    def mfmas(f):
        r = []
        for mi in range(4):
            for t in range(7):
                c = acc(mi, t)
                r.append(f"v_mfma_f32_16x16x32_bf16 v[{c}:{c+3}], v[{FA[f]+4*mi}:{FA[f]+4*mi+3}], v[{FB[f]+4*t}:{FB[f]+4*t+3}], v[{c}:{c+3}]")
        return r
    def block(f, rd, extra=None):
        mf = mfmas(f)
        rd = list(rd)
        for i, m in enumerate(mf):
            a(m)
            if rd: a(rd.pop(0))
            if extra and (i + 1) in extra:
                for x in extra[i + 1]: a(x)
    a("s_barrier")
    if stamps: a("s_memrealtime s[68:69]")
    for x in reads(0, 12, 14): a(x)
    a("s_waitcnt lgkmcnt(0)")
    a(".p2align 3")
    a("L_cloop:")
    upd = [
        f"s_add_u32 s36, s36, {A_SLOT}",
        f"s_cmp_eq_u32 s36, {NA*A_SLOT}",
        f"s_cselect_b32 s36, 0, s36",
        f"s_xor_b32 s37, s37, {B_SLOT}",
        "v_add_u32 v12, s36, v8",
        "v_add_u32 v14, s37, v10",
    ]
    ex = {12: upd[:2], 13: upd[2:4], 14: upd[4:5], 15: upd[5:6], bar_pos: ["s_waitcnt lgkmcnt(0)", "s_barrier"]}
    block(0, reads(1, 13, 15), ex)
    ex = {12: ["v_add_u32 v13, s36, v9"], 13: ["v_add_u32 v15, s37, v11"], 14: ["s_sub_u32 s38, s38, 1"], 27: ["s_cmp_lg_u32 s38, 0"], 28: ["s_waitcnt lgkmcnt(0)"]}
    block(1, reads(0, 12, 14), ex)
    a("s_cbranch_scc1 L_cloop")
    block(0, reads(1, 13, 15), {28: ["s_waitcnt lgkmcnt(0)"]})
    block(1, [])
    if stamps: a("s_memrealtime s[70:71]")
    a("s_nop 7")
    a("s_nop 1")
    tmp = 16
    for mi in range(4):
        for rp in range(2):
            regs = []
            for r in (2 * rp, 2 * rp + 1):
                b = tmp + (r & 1) * 4 + ((mi * 2 + rp) & 3) * 12
                a(f"v_cvt_pk_bf16_f32 v{b}, v{acc(mi,0)+r}, v{acc(mi,1)+r}")
                a(f"v_cvt_pk_bf16_f32 v{b+1}, v{acc(mi,2)+r}, v{acc(mi,3)+r}")
                a(f"v_cvt_pk_bf16_f32 v{b+2}, v{acc(mi,4)+r}, v{acc(mi,5)+r}")
                regs.append(b)
            b6 = tmp + 8 + ((mi * 2 + rp) & 3) * 12
            a(f"v_cvt_pk_bf16_f32 v{b6}, v{acc(mi,6)+2*rp}, v{acc(mi,6)+2*rp+1}")
            for idx, r in enumerate((2 * rp, 2 * rp + 1)):
                b = regs[idx]
                a(f"s_mov_b32 s34, {(16*mi+r)*7168}")
                a(f"buffer_store_dwordx2 v[{b}:{b+1}], v112, s[24:27], s34 offen{stC}")
                a(f"buffer_store_dword v{b+2}, v113, s[24:27], s34 offen{stC}")
                if idx == 0:
                    a(f"buffer_store_short v{b6}, v114, s[24:27], s34 offen{stC}")
                else:
                    a(f"buffer_store_short_d16_hi v{b6}, v114, s[24:27], s34 offen{stC}")
    if stamps:
        a("""
        s_memrealtime s[72:73]
        s_waitcnt vmcnt(0)
        s_memrealtime s[62:63]
        s_memtime s[66:67]
        s_waitcnt lgkmcnt(0)
        s_cmp_lg_u32 s3, 0
        s_cbranch_scc1 L_end
        """)
        for i in range(16):
            a(f"v_mov_b32 v{20+i}, s{60+i}")
        a("""
        s_lshl_b32 s34, s2, 6
        v_mov_b32 v36, s34
        v_cmp_eq_u32 vcc, 0, v2
        s_and_saveexec_b64 s[40:41], vcc
        global_store_dwordx4 v36, v[20:23], s[58:59]
        global_store_dwordx4 v36, v[24:27], s[58:59] offset:16
        global_store_dwordx4 v36, v[28:31], s[58:59] offset:32
        global_store_dwordx4 v36, v[32:35], s[58:59] offset:48
        """)
    a("s_endpgm")
    VA = 16; VB = 24; VW = 32; C1 = 36; C2 = 40; RAW = [48, 80]; PK = 112
    a("L_prod:")
    a(f"""
    s_sub_u32 s3, s3, 4           ; p
    ; A voffsets
    v_lshrrev_b32 v3, 3, v2       ; l>>3
    v_and_b32 v4, 7, v2
    v_xor_b32 v4, v4, v3
    v_lshlrev_b32 v4, 4, v4
    s_lshl_b32 s34, s30, 8
    s_lshl_b32 s35, s3, 6
    s_add_u32 s34, s34, s35
    v_add_u32 v3, s34, v3
    v_lshlrev_b32 v3, 11, v3
    v_add_u32 v{VA}, v3, v4
    """)
    for j in range(1, 8):
        a(f"v_add_u32 v{VA+j}, {16384*j}, v{VA}")
    a(f"""
    ; B voffsets
    v_lshrrev_b32 v5, 5, v2       ; h
    v_and_b32 v6, 31, v2          ; q
    s_lshl_b32 s34, s3, 1
    v_add_u32 v5, s34, v5         ; c = 2p+h
    v_mul_u32_u24 v7, {8*14336}, v5
    v_lshlrev_b32 v8, 4, v6
    s_mul_i32 s34, s31, 448
    v_add3_u32 v7, v7, v8, s34
    v_cmp_gt_u32 vcc, 28, v6
    v_mov_b32 v9, 0x40000000
    s_nop 0
    v_cndmask_b32 v{VB}, v9, v7, vcc
    """)
    for i in range(1, 8):
        a(f"v_add_u32 v{VB+i}, {14336*i}, v{VB}")
    a(f"""
    v_lshlrev_b32 v8, 3, v6
    s_mul_i32 s34, s31, 224
    v_add_u32 v8, s34, v8
    v_cndmask_b32 v8, v9, v8, vcc
    s_waitcnt lgkmcnt(0)
    s_mov_b32 s8, s4
    s_mov_b32 s9, s5
    s_mov_b32 s10, {M*K*2}
    s_mov_b32 s11, 0x00020000
    s_mov_b32 s12, s6
    s_mov_b32 s13, s7
    s_mov_b32 s14, {K*N*4}
    s_mov_b32 s15, 0x00020000
    s_mov_b32 s40, s16
    s_mov_b32 s41, s17
    s_mov_b32 s42, {N*2}
    s_mov_b32 s43, 0x00020000
    s_mov_b32 s44, s18
    s_mov_b32 s45, s19
    s_mov_b32 s46, {N*2}
    s_mov_b32 s47, 0x00020000
    buffer_load_dwordx2 v[44:45], v8, s[40:43], 0 offen
    buffer_load_dwordx2 v[46:47], v8, s[44:47], 0 offen
    s_lshl_b32 s39, s3, 13
    """)
    def kstep_setup():
        return [f"s_lshl_b32 s34, s32, 7", f"s_mul_i32 s35, s32, {64*14336}",
                "s_add_u32 s32, s32, 1", "s_and_b32 s32, s32, 15"]
    def bloads(rs):
        return [f"buffer_load_dwordx4 v[{RAW[rs]+4*i}:{RAW[rs]+4*i+3}], v{VB+i}, s[12:15], s35 offen{ntB}" for i in range(8)]
    def aload(j):
        return f"buffer_load_dwordx4 v{VA+j}, s[8:11], s34 offen{ntA} lds"
    for st in range(2):
        for x in kstep_setup(): a(x)
        for x in bloads(st): a(x)
        a(f"s_add_u32 m0, s39, {st*A_SLOT}")
        for j in range(8):
            a("s_nop 0")
            a(aload(j))
            if j < 7: a("s_add_u32 m0, m0, 1024")
    a(f"""
    v_cmp_gt_u32 s[48:49], 16, v6
    v_cmp_gt_u32 s[50:51], 24, v6
    v_cmp_gt_u32 s[52:53], 28, v6
    v_mov_b32 v12, {B_BASE}
    v_and_b32 v13, 3, v6
    v_lshlrev_b32 v13, 4, v13
    v_add_u32 v13, {DUMMY}, v13
    """)
    for i in range(4):
        a(f"""
        v_lshlrev_b32 v10, 2, v6
        v_add_u32 v10, {i}, v10             ; 96+4(q-24)+i = 4q+i
        v_lshlrev_b32 v11, 1, v6
        v_add_u32 v11, {16*(4+(i&1)) - 32 + (i>>1)}, v11
        v_cndmask_b32 v10, v10, v11, s[50:51]
        v_add_u32 v11, {16*i}, v6
        v_cndmask_b32 v10, v10, v11, s[48:49]   ; R
        v_and_b32 v11, 7, v10
        v_xor_b32 v11, v11, v5
        v_lshlrev_b32 v11, 4, v11
        v_lshlrev_b32 v10, 7, v10
        v_add3_u32 v10, v10, v11, v12
        v_cndmask_b32 v{VW+i}, v13, v10, s[52:53]
        """)
    a("s_waitcnt vmcnt(32)")
    a("s_mov_b32 s48, 0x4b800000     ; 2^24")
    for i in range(4):
        sreg = 44 + (i >> 1); zreg = 46 + (i >> 1)
        if i & 1:
            a(f"v_and_b32 v10, 0xffff0000, v{sreg}")
            a(f"v_and_b32 v11, 0xffff0000, v{zreg}")
        else:
            a(f"v_lshlrev_b32 v10, 16, v{sreg}")
            a(f"v_lshlrev_b32 v11, 16, v{zreg}")
        a(f"v_mul_f32 v{C1+i}, s48, v10")
        a(f"v_mul_f32 v{C2+i}, -v11, v10")
    def dequant(rs, slot_off):
        r = []
        for i in range(4):
            for k in range(8):
                x = RAW[rs] + 4 * k + i
                r.append(f"v_fma_mix_f32 v{x}, v{x}, v{C1+i}, v{C2+i} op_sel_hi:[1,0,0]")
            for k in range(4):
                x = RAW[rs] + 8 * k + i
                r.append(f"v_cvt_pk_bf16_f32 v{PK+4*i+k}, v{x}, v{x+4}")
            r.append(f"ds_write_b128 v{VW+i}, v[{PK+4*i}:{PK+4*i+3}] offset:{slot_off}")
        return r
    a("s_waitcnt vmcnt(24)")
    for x in dequant(0, 0): a(x)
    a("s_waitcnt vmcnt(16) lgkmcnt(0)")
    a("s_barrier")
    a(f"s_mov_b32 s36, {2*A_SLOT}")
    a(f"s_mov_b32 s38, {(NSTEP-2)//2}")
    a(".p2align 3")
    a("L_ploop:")
    for par in range(2):
        for x in kstep_setup(): a(x)
        a("s_add_u32 m0, s39, s36")
        a(f"s_add_u32 s36, s36, {A_SLOT}")
        a(f"s_cmp_eq_u32 s36, {NA*A_SLOT}")
        a("s_cselect_b32 s36, 0, s36")
        a("s_waitcnt vmcnt(8)")
        dq = dequant(1 - par, (1 - par) * B_SLOT)
        loads = bloads(par) + [aload(j) for j in range(8)]
        per = -(-len(dq) // 16)
        for li, ld in enumerate(loads):
            a(ld)
            if li >= 8 and li < 15: a("s_add_u32 m0, m0, 1024")
            for x in dq[li * per:(li + 1) * per]: a(x)
            if li >= 8 and li < 15 and not dq[li * per:(li + 1) * per]: a("s_nop 0")
        if par == 1:
            a("s_sub_u32 s38, s38, 1")
            a("s_cmp_lg_u32 s38, 0")
        a("s_waitcnt vmcnt(16) lgkmcnt(0)")
        a("s_barrier")
    a("s_cbranch_scc1 L_ploop")
    a("s_waitcnt vmcnt(8)")
    for x in dequant(1, B_SLOT): a(x)
    a("s_waitcnt vmcnt(0) lgkmcnt(0)")
    a("s_barrier")
    a("L_end:")
    a("s_endpgm")
    return wrap(a.text(), 256, 512, LDS, 240, 96)

if __name__ == "__main__":
    cfgs = {
      "v1_col_r21": dict(mapping="col", rot=(2, 1)),
      "v1_col_r21_st": dict(mapping="col", rot=(2, 1), stamps=True),
      "v1_col_r00_st": dict(mapping="col", rot=(0, 0), stamps=True),
      "v1_col_r20_st": dict(mapping="col", rot=(2, 0), stamps=True),
      "v1_col_r21_ntB_st": dict(mapping="col", rot=(2, 1), stamps=True, ntB=" nt"),
    }
    for n, c in cfgs.items():
        open(f"{n}.s", "w").write(gen(**c))
    print(" ".join(f"work/{n}.s" for n in cfgs))
```

```python
import gen_v1
from ab import KN
def spin(txt, ticks):
    txt = txt.replace("    s_cbranch_scc1 L_end\n", "    s_cbranch_scc1 L_end\n    s_memrealtime s[80:81]\n", 1)
    i = txt.index("    s_endpgm\n")
    code = "    s_waitcnt vmcnt(0)\n"
    code += f"""L_spin:
    s_memrealtime s[82:83]
    s_waitcnt lgkmcnt(0)
    s_sub_u32 s82, s82, s80
    s_cmp_lt_u32 s82, {ticks}
    s_cbranch_scc1 L_spin
"""
    return txt[:i] + code + txt[i:]
def add_trivial(txt, first, grid=256, block=256, ticks=0):
    import re
    m = re.search(r"; @launch grid=\((\d+),1,1\) block=\((\d+),1,1\) lds=(\d+)\n", txt)
    l1 = f"; @launch kernel={KN} grid=({m.group(1)},1,1) block=({m.group(2)},1,1) lds={m.group(3)}\n"
    l2 = f"; @launch kernel=triv_kernel grid=({grid},1,1) block=({block},1,1) lds=0\n"
    txt = txt.replace(m.group(0), (l2 + l1) if first else (l1 + l2))
    body = ""
    if ticks:
        body = f"""    s_memrealtime s[4:5]
L_spin2:
    s_memrealtime s[6:7]
    s_waitcnt lgkmcnt(0)
    s_sub_u32 s6, s6, s4
    s_cmp_lt_u32 s6, {ticks}
    s_cbranch_scc1 L_spin2
"""
    k2 = f""".globl triv_kernel
.p2align 8
.type triv_kernel,@function
triv_kernel:
{body}    s_endpgm
"""
    txt = txt.replace('.section .rodata,"a"\n', k2 + '.section .rodata,"a"\n', 1)
    txt += """.p2align 6
.amdhsa_kernel triv_kernel
  .amdhsa_next_free_vgpr 8
  .amdhsa_next_free_sgpr 16
  .amdhsa_accum_offset 8
  .amdhsa_group_segment_fixed_size 0
  .amdhsa_kernarg_size 56
  .amdhsa_user_sgpr_count 2
  .amdhsa_user_sgpr_kernarg_segment_ptr 1
  .amdhsa_system_sgpr_workgroup_id_x 1
.end_amdhsa_kernel
"""
    return txt
if __name__ == "__main__":
    base = gen_v1.gen(mapping="col", rot=(0,0))
    open("d_spin40_sc1.s","w").write(spin(gen_v1.gen(mapping="col", rot=(0,0), stC=" sc1"), 4000))
    open("d_spin40_sc01.s","w").write(spin(gen_v1.gen(mapping="col", rot=(0,0), stC=" sc0 sc1"), 4000))
    open("d_spin40_nt.s","w").write(spin(gen_v1.gen(mapping="col", rot=(0,0), stC=" nt"), 4000))
    open("d_spin40_post.s","w").write(add_trivial(spin(base, 4000), False))
    open("d_spin40_pre.s","w").write(add_trivial(spin(base, 4000), True))
    open("d_spin40_pre5.s","w").write(add_trivial(spin(base, 4000), True, ticks=500))
```

```python
import sys
from ab import *

M, N, K = 2048, 3584, 1024
BM, BN, BK = 128, 224, 64
NSTEP = K // BK
A_SZ = BM * BK * 2
B_SZ = BN * BK * 2
STAGE = A_SZ + B_SZ
NS = 3
LDS = NS * STAGE
WSB = 16 * 16 * B_SZ
STAMP_OFF = 8 << 20
WOFF = 0

def srd(a, d, lo, hi, size):
    a(f"s_mov_b32 s{d}, s{lo}\ns_mov_b32 s{d+1}, s{hi}\ns_mov_b32 s{d+2}, {size}\ns_mov_b32 s{d+3}, 0x00020000")

def kd(name, nvgpr, nsgpr):
    accum = (nvgpr + 3) // 4 * 4
    return f""".p2align 6
.amdhsa_kernel {name}
  .amdhsa_next_free_vgpr {nvgpr}
  .amdhsa_next_free_sgpr {nsgpr}
  .amdhsa_accum_offset {accum}
  .amdhsa_group_segment_fixed_size 0
  .amdhsa_kernarg_size 56
  .amdhsa_user_sgpr_count 2
  .amdhsa_user_sgpr_kernarg_segment_ptr 1
  .amdhsa_system_sgpr_workgroup_id_x 1
.end_amdhsa_kernel
"""

def gen_k1(ntQ="", stW=" sc1", warmA=True):
    a = Asm()
    a(f"""
    s_cmp_ge_u32 s2, 256
    s_cbranch_scc1 K1_end
    s_load_dwordx4 s[4:7], s[0:1], 0
    s_load_dwordx4 s[16:19], s[0:1], 16
    s_load_dwordx2 s[20:21], s[0:1], 48
    v_lshrrev_b32 v1, 6, v0
    v_and_b32 v2, 63, v0
    s_and_b32 s28, s2, 15          ; nt
    v_readfirstlane_b32 s3, v1
    s_lshr_b32 s29, s2, 4          ; kstep
    s_lshl_b32 s30, s29, 3
    s_add_u32 s30, s30, s3
    s_mul_i32 s31, s30, {8*14336}
    s_mul_i32 s32, s28, 896
    s_add_u32 s31, s31, s32
    v_lshlrev_b32 v3, 4, v2        ; q*16
    v_cmp_gt_u32 vcc, 56, v2
    v_mov_b32 v9, 0x40000000
    v_lshlrev_b32 v4, 3, v2
    v_cndmask_b32 v3, v9, v3, vcc
    v_cndmask_b32 v4, v9, v4, vcc
    s_mul_i32 s33, s28, 448
    s_waitcnt lgkmcnt(0)
    """)
    srd(a, 12, 6, 7, K*N*4)
    srd(a, 40, 16, 17, N*2)
    srd(a, 44, 18, 19, N*2)
    srd(a, 24, 20, 21, WSB)
    if WOFF: a(f"s_add_u32 s24, s24, {WOFF}\ns_addc_u32 s25, s25, 0")
    RAW = 16; C1 = 8; C2 = 12; PK = 48
    for e in range(8):
        if e: a(f"s_add_u32 s31, s31, 14336")
        a(f"buffer_load_dwordx4 v[{RAW+4*e}:{RAW+4*e+3}], v3, s[12:15], s31 offen{ntQ}")
    a("buffer_load_dwordx2 v[64:65], v4, s[40:43], s33 offen")
    a("buffer_load_dwordx2 v[66:67], v4, s[44:47], s33 offen")
    nw = 0
    if warmA:
        srd(a, 8, 4, 5, M*K*2)
        a("s_lshl_b32 s34, s2, 14\nv_lshlrev_b32 v5, 5, v0")
        a("buffer_load_dwordx4 v[68:71], v5, s[8:11], s34 offen")
        nw = 1
    a(f"""
    s_lshl_b32 s34, s28, 4
    s_add_u32 s34, s34, s29
    s_mul_i32 s34, s34, {B_SZ}
    s_mul_i32 s35, s3, 3584
    s_add_u32 s34, s34, s35
    v_xor_b32 v6, 16, v3
    s_mov_b32 s48, 0x4b800000
    s_waitcnt vmcnt({nw})
    """)
    for i in range(4):
        sreg = 64 + (i >> 1); zreg = 66 + (i >> 1)
        if i & 1:
            a(f"v_and_b32 v72, 0xffff0000, v{sreg}\nv_and_b32 v73, 0xffff0000, v{zreg}")
        else:
            a(f"v_lshlrev_b32 v72, 16, v{sreg}\nv_lshlrev_b32 v73, 16, v{zreg}")
        a(f"v_mul_f32 v{C1+i}, s48, v72")
        a(f"v_mul_f32 v{C2+i}, -v73, v72")
    for i in range(4):
        for k in range(8):
            x = RAW + 4 * k + i
            a(f"v_fma_mix_f32 v{x}, v{x}, v{C1+i}, v{C2+i} op_sel_hi:[1,0,0]")
        for k in range(4):
            x = RAW + 8 * k + i
            a(f"v_cvt_pk_bf16_f32 v{PK+4*i+k}, v{x}, v{x+4}")
        va = 3 if i < 2 else 6
        a(f"buffer_store_dwordx4 v[{PK+4*i}:{PK+4*i+3}], v{va}, s[24:27], s34 offen offset:{896*i}{stW}")
    a("K1_end:")
    a("s_endpgm")
    return a.text()

def gen_k2(rotn=0, stC=" sc1", stamps=False, bar_pos=28, snake=True, flB="", flA="", prio=None):
    a = Asm()
    a(f"""
    s_cmp_ge_u32 s2, 256
    s_cbranch_scc1 L_end
    """)
    if stamps: a("s_memrealtime s[60:61]\ns_memtime s[64:65]")
    a(f"""
    s_load_dwordx2 s[4:5], s[0:1], 0
    s_load_dwordx2 s[20:21], s[0:1], 32
    s_load_dwordx2 s[6:7], s[0:1], 48
    v_lshrrev_b32 v1, 6, v0     ; wave
    v_and_b32 v2, 63, v0        ; lane
    s_and_b32 s28, s2, 7
    v_readfirstlane_b32 s3, v1
    s_lshr_b32 s29, s2, 3
    s_and_b32 s30, s28, 1
    s_lshl_b32 s30, s30, 3
    s_and_b32 s31, s29, 7
    s_add_u32 s30, s30, s31     ; mt
    s_lshr_b32 s28, s28, 1      ; xn
    s_lshl_b32 s33, s28, 2
    s_lshr_b32 s31, s29, 3
    s_add_u32 s31, s31, s33     ; nt
    s_mul_i32 s32, s28, {rotn}
    s_and_b32 s32, s32, 15      ; kidx
    s_cmp_ge_u32 s3, 4
    s_cbranch_scc1 L_prod
    """)
    ACC = 128
    FX = [16, 64]; FW = [32, 80]
    def acc(mi, t): return ACC + (mi * 7 + t) * 4
    a(f"""
    s_and_b32 s40, s3, 1          ; wm
    s_lshr_b32 s41, s3, 1         ; wn
    v_and_b32 v3, 15, v2          ; i
    v_lshrrev_b32 v4, 4, v2       ; g
    v_and_b32 v5, 7, v2
    v_xor_b32 v5, v5, v4
    v_lshlrev_b32 v5, 4, v5
    v_lshlrev_b32 v6, 7, v3
    v_add_u32 v5, v5, v6
    s_lshl_b32 s34, s40, 13
    v_add_u32 v108, s34, v5
    v_xor_b32 v109, 64, v108
    v_and_b32 v5, 3, v2           ; e
    v_mul_u32_u24 v6, 224, v4
    v_mul_u32_u24 v7, 56, v5
    v_add_u32 v6, v6, v7
    v_lshrrev_b32 v7, 2, v3       ; a
    v_lshl_add_u32 v6, v7, 1, v6
    v_lshrrev_b32 v5, 1, v5       ; h
    v_add_u32 v6, v6, v5          ; tb=0: +h
    v_lshlrev_b32 v6, 4, v6
    v_add_u32 v6, {A_SZ}, v6
    s_lshl_b32 s34, s41, 7
    v_add_u32 v110, s34, v6
    v_xor_b32 v111, 16, v110
    s_lshl_b32 s34, s41, 4
    v_xor_b32 v112, s34, v6
    v_add_u32 v112, 768, v112
    """)
    for r in range(112):
        a(f"v_mov_b32 v{ACC+r}, 0")
    a(f"""
    s_mov_b32 s36, 0
    s_mov_b32 s38, {NSTEP-1}
    v_mov_b32 v8, v108
    v_mov_b32 v9, v109
    v_mov_b32 v10, v110
    v_mov_b32 v11, v111
    v_mov_b32 v12, v112
    v_mov_b32 v13, v110
    v_mov_b32 v14, v111
    v_mov_b32 v15, v112
    """)
    if prio is not None: a(f"s_setprio {prio}")
    def reads(f):
        vx = 8 + f; vw = 10 + 3 * f
        r = [f"ds_read_b128 v[{FX[f]}:{FX[f]+3}], v{vx} offset:0"]
        for t in range(7):
            if t < 6: va, off = vw + (t & 1), (t >> 1) * 256
            else: va, off = vw + 2, 0
            r.append(f"ds_read_b128 v[{FW[f]+4*t}:{FW[f]+4*t+3}], v{va} offset:{off + f*14336}")
        for mi in range(1, 4):
            r.append(f"ds_read_b128 v[{FX[f]+4*mi}:{FX[f]+4*mi+3}], v{vx} offset:{2048*mi}")
        return r
    def mfmas(f):
        r = []
        for mi in range(4):
            ts = range(7) if (not snake or mi % 2 == 0) else range(6, -1, -1)
            for t in ts:
                c = acc(mi, t)
                r.append(f"v_mfma_f32_16x16x32_bf16 v[{c}:{c+3}], v[{FW[f]+4*t}:{FW[f]+4*t+3}], v[{FX[f]+4*mi}:{FX[f]+4*mi+3}], v[{c}:{c+3}]")
        return r
    def block(f, rd, extra=None):
        mf = mfmas(f); rd = list(rd)
        for i, m in enumerate(mf):
            a(m)
            if rd: a(rd.pop(0))
            if extra and (i + 1) in extra:
                for x in extra[i + 1]: a(x)
    a("s_barrier")
    if stamps: a("s_memrealtime s[68:69]\ns_memtime s[74:75]")
    for x in reads(0): a(x)
    a("s_waitcnt lgkmcnt(0)")
    a(".p2align 3")
    a("L_cloop:")
    ex = {12: [f"s_add_u32 s36, s36, {STAGE}", f"s_cmp_eq_u32 s36, {NS*STAGE}"], 13: ["s_cselect_b32 s36, 0, s36"],
          14: ["v_add_u32 v8, s36, v108"], 15: ["v_add_u32 v10, s36, v110"], 16: ["v_add_u32 v11, s36, v111"], 17: ["v_add_u32 v12, s36, v112"],
          bar_pos: ["s_waitcnt lgkmcnt(0)", "s_barrier"]}
    block(0, reads(1), ex)
    ex = {12: ["v_add_u32 v9, s36, v109"], 13: ["v_add_u32 v13, s36, v110"], 14: ["v_add_u32 v14, s36, v111"], 15: ["v_add_u32 v15, s36, v112"],
          16: ["s_sub_u32 s38, s38, 1"], 27: ["s_cmp_lg_u32 s38, 0"], 28: ["s_waitcnt lgkmcnt(0)"]}
    block(1, reads(0), ex)
    a("s_cbranch_scc1 L_cloop")
    block(0, reads(1), {28: ["s_waitcnt lgkmcnt(0)", "s_barrier"]})
    exa = {2: ["v_lshrrev_b32 v5, 1, v3"], 3: ["v_and_b32 v5, 3, v5"], 4: ["v_xor_b32 v5, v5, v4"], 5: ["v_lshlrev_b32 v5, 4, v5"],
           6: ["v_mul_u32_u24 v6, 448, v3"], 7: ["v_add_u32 v5, v5, v6"], 8: [f"s_mul_i32 s34, s40, {64*448}"], 9: ["v_add_u32 v5, s34, v5"],
           10: ["s_lshl_b32 s34, s41, 6"], 11: ["v_add_u32 v6, s34, v5"], 12: ["s_lshl_b32 s34, s41, 3"], 13: ["v_add_u32 v7, s34, v5"]}
    block(1, [], exa)
    if stamps: a("s_memrealtime s[70:71]\ns_memtime s[76:77]")
    a("s_nop 1")
    for mi in range(4):
        if mi == 3: a("s_nop 7")
        b = 16 + 16 * mi
        for p in range(3):
            for tb in range(2):
                c = acc(mi, 2 * p + tb)
                a(f"v_cvt_pk_bf16_f32 v{b+4*p+2*tb}, v{c}, v{c+1}")
                a(f"v_cvt_pk_bf16_f32 v{b+4*p+2*tb+1}, v{c+2}, v{c+3}")
            a(f"ds_write_b128 v6, v[{b+4*p}:{b+4*p+3}] offset:{mi*16*448 + p*128}")
        c = acc(mi, 6)
        a(f"v_cvt_pk_bf16_f32 v{b+12}, v{c}, v{c+1}")
        a(f"v_cvt_pk_bf16_f32 v{b+13}, v{c+2}, v{c+3}")
        a(f"ds_write_b64 v7, v[{b+12}:{b+13}] offset:{mi*16*448 + 384}")
    a("s_branch L_store")
    a("L_prod:")
    a(f"""
    s_sub_u32 s40, s3, 4          ; p
    v_lshrrev_b32 v3, 3, v2
    v_and_b32 v4, 7, v2
    v_xor_b32 v4, v4, v3
    v_lshlrev_b32 v4, 4, v4
    s_lshl_b32 s34, s30, 7
    s_lshl_b32 s35, s40, 5
    s_add_u32 s34, s34, s35
    v_add_u32 v3, s34, v3
    v_lshlrev_b32 v3, 11, v3
    v_add_u32 v16, v3, v4
    v_add_u32 v17, {16384-1024}, v16
    v_add_u32 v18, {2*(16384-1024)}, v16
    v_add_u32 v19, {3*(16384-1024)}, v16
    v_lshlrev_b32 v5, 4, v2
    s_mul_i32 s34, s31, {16*B_SZ}
    s_mul_i32 s35, s40, 7168
    s_add_u32 s34, s34, s35
    v_add_u32 v20, s34, v5
    v_add_u32 v21, 4096, v20
    s_lshl_b32 s41, s40, 12
    s_add_u32 s42, s35, {A_SZ}
    s_waitcnt lgkmcnt(0)
    """)
    srd(a, 8, 4, 5, M*K*2)
    srd(a, 12, 6, 7, WSB)
    if WOFF: a(f"s_add_u32 s12, s12, {WOFF}\ns_addc_u32 s13, s13, 0")
    def issue(slot):
        a(f"""
        s_lshl_b32 s34, s32, 7
        s_mul_i32 s35, s32, {B_SZ}
        s_add_u32 m0, s41, {slot}
        s_add_u32 s32, s32, 1
        """)
        for j in range(4):
            a(f"buffer_load_dwordx4 v{16+j}, s[8:11], s34 offen offset:{1024*j}{flA} lds")
        a(f"s_add_u32 m0, s42, {slot}")
        a("s_and_b32 s32, s32, 15")
        for j in range(4):
            a(f"buffer_load_dwordx4 v20, s[12:15], s35 offen offset:{1024*j}{flB} lds")
        a("s_add_u32 m0, m0, 4096")
        a("s_nop 0")
        for j in range(3):
            a(f"buffer_load_dwordx4 v21, s[12:15], s35 offen offset:{1024*j}{flB} lds")
    issue("0")
    issue(str(STAGE))
    a("s_waitcnt vmcnt(11)")
    a("s_barrier")
    a(f"s_mov_b32 s36, {2*STAGE}")
    a(f"s_mov_b32 s38, {NSTEP-2}")
    a(".p2align 3")
    a("L_ploop:")
    issue("s36")
    a(f"""
    s_add_u32 s36, s36, {STAGE}
    s_cmp_eq_u32 s36, {NS*STAGE}
    s_cselect_b32 s36, 0, s36
    s_sub_u32 s38, s38, 1
    s_cmp_lg_u32 s38, 0
    s_waitcnt vmcnt(11)
    s_barrier
    s_cbranch_scc1 L_ploop
    s_waitcnt vmcnt(0)
    s_barrier
    s_barrier
    """)
    a("L_store:")
    a(f"""
    v_and_b32 v3, 31, v2          ; c
    v_lshrrev_b32 v4, 5, v2
    s_lshl_b32 s34, s3, 4
    v_add_u32 v4, s34, v4
    v_mul_u32_u24 v5, 448, v4
    v_lshlrev_b32 v6, 4, v3
    v_add_u32 v8, v5, v6          ; variant 0
    v_xor_b32 v7, 16, v6
    v_add_u32 v9, v5, v7
    v_xor_b32 v7, 32, v6
    v_add_u32 v10, v5, v7
    v_xor_b32 v7, 48, v6
    v_add_u32 v11, v5, v7
    s_lshl_b32 s34, s30, 7
    v_add_u32 v4, s34, v4
    v_mul_u32_u24 v4, 7168, v4
    s_mul_i32 s35, s31, 448
    v_add3_u32 v12, v4, v6, s35
    v_cmp_gt_u32 vcc, 28, v3
    """)
    srd(a, 24, 20, 21, M*N*2)
    a("""
    s_waitcnt lgkmcnt(0)
    s_barrier
    s_and_b64 exec, exec, vcc
    """)
    for i in range(8):
        a(f"ds_read_b128 v[{16+4*i}:{19+4*i}], v{8+(i&3)} offset:{i*896}")
    for i in range(8):
        a(f"s_mov_b32 s34, {i*2*7168}")
        a(f"s_waitcnt lgkmcnt({7-i})")
        a(f"buffer_store_dwordx4 v[{16+4*i}:{19+4*i}], v12, s[24:27], s34 offen{stC}")
    if stamps:
        a(f"""
        s_memrealtime s[72:73]
        s_waitcnt vmcnt(0)
        s_memrealtime s[62:63]
        s_memtime s[66:67]
        s_waitcnt lgkmcnt(0)
        s_mov_b64 exec, -1
        s_sub_u32 s74, s76, s74
        s_mov_b32 s75, 0
        s_cmp_lg_u32 s3, 0
        s_cbranch_scc1 L_end
        """)
        for i in range(16):
            a(f"v_mov_b32 v{20+i}, s{60+i}")
        a(f"""
        s_lshl_b32 s34, s2, 6
        s_add_u32 s34, s34, {STAMP_OFF}
        v_mov_b32 v36, s34
        v_cmp_eq_u32 vcc, 0, v2
        s_and_saveexec_b64 s[40:41], vcc
        global_store_dwordx4 v36, v[20:23], s[6:7]
        global_store_dwordx4 v36, v[24:27], s[6:7] offset:16
        global_store_dwordx4 v36, v[28:31], s[6:7] offset:32
        global_store_dwordx4 v36, v[32:35], s[6:7] offset:48
        """)
    a("L_end:")
    a("s_endpgm")
    return a.text()

def gen(k1={}, k2={}):
    s = HEADER
    s += f"; @launch kernel=dq_kernel grid=(256,1,1) block=(512,1,1) lds=0\n"
    s += f"; @launch kernel={KN} grid=(256,1,1) block=(512,1,1) lds={LDS}\n"
    s += '.amdgcn_target "amdgcn-amd-amdhsa--gfx950"\n.text\n'
    s += f".globl dq_kernel\n.p2align 8\n.type dq_kernel,@function\ndq_kernel:\n" + gen_k1(**k1)
    s += f".globl {KN}\n.p2align 8\n.type {KN},@function\n{KN}:\n" + gen_k2(**k2)
    s += '.section .rodata,"a"\n' + kd("dq_kernel", 80, 64) + kd(KN, 240, 96)
    return s

if __name__ == "__main__":
    cfgs = {
      "v2_st": dict(k2=dict(stamps=True)),
      "v2_st_rot4": dict(k2=dict(stamps=True, rotn=4)),
      "v2_st_nowarm": dict(k1=dict(warmA=False), k2=dict(stamps=True)),
      "v2_st_nowarm_rot4": dict(k1=dict(warmA=False), k2=dict(stamps=True, rotn=4)),
      "v2_st_plainW": dict(k1=dict(stW=""), k2=dict(stamps=True)),
      "v2_st_nosnake": dict(k2=dict(stamps=True, snake=False)),
      "v2_st_flB": dict(k2=dict(stamps=True, flB=" sc1")),
    }
    for n, c in cfgs.items():
        open(f"{n}.s", "w").write(gen(**c))
    print(" ".join(f"work/{n}.s" for n in cfgs))
    open("v2.s", "w").write(gen())
```

```python
import gen_v2
def spin(txt, ticks):
    txt = txt.replace("    s_cbranch_scc1 L_end\n", "    s_cbranch_scc1 L_end\n    s_memrealtime s[80:81]\n", 1)
    code = f"""    s_waitcnt vmcnt(0)
L_spin:
    s_memrealtime s[82:83]
    s_waitcnt lgkmcnt(0)
    s_sub_u32 s82, s82, s80
    s_cmp_lt_u32 s82, {ticks}
    s_cbranch_scc1 L_spin
"""
    return txt.replace("L_end:\n", code + "L_end:\n", 1)
c = {
 "e_base": dict(),
 "e_nt": dict(k1=dict(ntQ=" nt")),
 "e_nowarm": dict(k1=dict(warmA=False)),
 "e_nt_nowarm": dict(k1=dict(ntQ=" nt", warmA=False)),
 "e_plainW": dict(k1=dict(stW="")),
 "e_nt_ntW": dict(k1=dict(ntQ=" nt", stW=" sc1 nt")),
}
for n, k in c.items():
    open(n + ".s", "w").write(spin(gen_v2.gen(**k), 4000))
```

```python
import gen_v2
ST = 9 << 20
def probe(txt, mode, amp=4):
    txt = txt.replace("    s_cbranch_scc1 K1_end\n", "    s_cbranch_scc1 K1_end\n    s_memrealtime s[56:57]\n", 1)
    code = f"""    s_waitcnt vmcnt(0)
    s_barrier
    s_memrealtime s[58:59]
    s_waitcnt lgkmcnt(0)
    s_cmp_lg_u32 s3, 7
    s_cbranch_scc1 K1_end
    v_mov_b32 v20, s56
    v_mov_b32 v21, s58
    s_lshl_b32 s34, s2, 3
    s_add_u32 s34, s34, {ST}
    v_mov_b32 v36, s34
    v_cmp_eq_u32 vcc, 0, v2
    s_and_saveexec_b64 s[40:41], vcc
    global_store_dwordx2 v36, v[20:21], s[20:21]
"""
    txt = txt.replace("K1_end:\n", code + "K1_end:\n", 1)
    txt = txt.replace("    s_cbranch_scc1 L_end\n", "    s_cbranch_scc1 L_end\n    s_memrealtime s[80:81]\n", 1)
    code = f"""    s_waitcnt vmcnt(0)
    s_lshl_b32 s34, s2, 3
    s_add_u32 s34, s34, {ST}
    s_add_u32 s84, s6, s34
    s_addc_u32 s85, s7, 0
    s_load_dwordx2 s[86:87], s[84:85], 0
    s_waitcnt lgkmcnt(0)
"""
    if mode == "abs":
        code += "    s_mov_b32 s80, s86\n    s_mov_b32 s88, 6000\n"
    elif mode == "dur":
        code += f"    s_sub_u32 s88, s87, s86\n    s_mul_i32 s88, s88, {amp}\n    s_add_u32 s88, s88, 6000\n    s_mov_b32 s80, s86\n"
    elif mode == "gap":
        code += f"    s_sub_u32 s88, s80, s86\n    s_mul_i32 s88, s88, {amp}\n    s_add_u32 s88, s88, 6000\n    s_mov_b32 s80, s86\n"
    code += f"""    s_min_u32 s88, s88, 20000
L_spin:
    s_memrealtime s[82:83]
    s_waitcnt lgkmcnt(0)
    s_sub_u32 s82, s82, s80
    s_cmp_lt_u32 s82, s88
    s_cbranch_scc1 L_spin
"""
    return txt.replace("L_end:\n", code + "L_end:\n", 1)
c = {"base": dict(), "nowarm": dict(k1=dict(warmA=False)), "nt": dict(k1=dict(ntQ=" nt"))}
for n, k in c.items():
    for m in ("abs", "dur", "gap"):
        open(f"p_{n}_{m}.s", "w").write(probe(gen_v2.gen(**k), m))
```

```python
import gen_v2
from ab import *
ST = 9 << 20
def k0(kind, nl=14, flags="", woff=0, toout=False):
    a = Asm()
    a(f"""
    s_cmp_ge_u32 s2, 256
    s_cbranch_scc1 K0_end
    s_memrealtime s[56:57]
    s_load_dwordx4 s[4:7], s[0:1], 0
    s_load_dwordx2 s[20:21], s[0:1], 48
    s_load_dwordx2 s[22:23], s[0:1], 32
    v_lshrrev_b32 v1, 6, v0
    v_and_b32 v2, 63, v0
    s_nop 0
    v_readfirstlane_b32 s3, v1
    s_waitcnt lgkmcnt(0)
    s_memrealtime s[60:61]
    """)
    gen_v2.srd(a, 12, 6, 7, 1024*3584*4)
    if toout: gen_v2.srd(a, 24, 22, 23, 2048*3584*2)
    else: gen_v2.srd(a, 24, 20, 21, 256 << 20)
    a(f"""
    s_mul_i32 s31, s2, {56*1024}
    v_lshlrev_b32 v3, 4, v0
    v_add_u32 v3, s31, v3
    s_mul_i32 s30, s2, {nl*4096}
    s_add_u32 s30, s30, {woff}
    v_lshlrev_b32 v4, 4, v0
    v_add_u32 v4, s30, v4
    """)
    if kind in ("load", "karg"):
        for i in range(nl):
            a(f"s_mov_b32 s32, {i*4096}")
            a(f"buffer_load_dwordx4 v[{8+4*i}:{11+4*i}], v3, s[12:15], s32 offen{flags}")
    elif kind == "store":
        for i in range(nl):
            a(f"s_mov_b32 s32, {i*4096}")
            a(f"buffer_store_dwordx4 v[{8}:{11}], v4, s[24:27], s32 offen{flags}")
    a(f"""
    s_waitcnt vmcnt(0)
    s_barrier
    s_memrealtime s[58:59]
    s_waitcnt lgkmcnt(0)
    s_cmp_lg_u32 s3, 0
    s_cbranch_scc1 K0_end
    """)
    if kind == "karg": a("s_sub_u32 s58, s60, s56")
    else: a("s_sub_u32 s58, s58, s60")
    a(f"""
    v_mov_b32 v20, s58
    v_mov_b32 v21, s56
    s_lshl_b32 s34, s2, 3
    s_add_u32 s34, s34, {ST}
    v_mov_b32 v36, s34
    v_cmp_eq_u32 vcc, 0, v2
    s_and_saveexec_b64 s[40:41], vcc
    global_store_dwordx2 v36, v[20:21], s[20:21]
    K0_end:
    s_endpgm
    """)
    return a.text()
def build(k0txt, red="mean", amp=8):
    txt = gen_v2.gen()
    txt = txt.replace("; @launch kernel=dq_kernel", "; @launch kernel=pr_kernel grid=(256,1,1) block=(256,1,1) lds=100000\n; @launch kernel=dq_kernel", 1)
    txt = txt.replace(".globl dq_kernel\n", ".globl pr_kernel\n.p2align 8\n.type pr_kernel,@function\npr_kernel:\n" + k0txt + ".globl dq_kernel\n", 1)
    txt += gen_v2.kd("pr_kernel", 80, 96)
    txt = txt.replace("    s_cbranch_scc1 L_end\n", "    s_cbranch_scc1 L_end\n    s_memrealtime s[80:81]\n", 1)
    code = f"""    s_waitcnt vmcnt(0)
    s_add_u32 s84, s6, {ST}
    s_addc_u32 s85, s7, 0
    s_mov_b32 s88, 0
    s_mov_b32 s89, 0
L_red:
    s_load_dwordx2 s[86:87], s[84:85], s89
    s_waitcnt lgkmcnt(0)
"""
    code += {"mean": "    s_add_u32 s88, s88, s86\n", "max": "    s_max_u32 s88, s88, s86\n"}[red]
    code += f"""    s_add_u32 s89, s89, 56
    s_cmp_lt_u32 s89, 1792
    s_cbranch_scc1 L_red
    s_mul_i32 s88, s88, {amp}
"""
    if red == "mean": code += "    s_lshr_b32 s88, s88, 5\n"
    code += f"""    s_add_u32 s88, s88, 8000
    s_mov_b32 s80, s87
    s_min_u32 s88, s88, 30000
L_spin:
    s_memrealtime s[82:83]
    s_waitcnt lgkmcnt(0)
    s_sub_u32 s82, s82, s80
    s_cmp_lt_u32 s82, s88
    s_cbranch_scc1 L_spin
"""
    return txt.replace("L_end:\n", code + "L_end:\n", 1)
if __name__ == "__main__":
    gen_v2.WOFF = 64 << 20
    c = {
     "r_st7_0": k0("store", nl=7, flags=" sc1"),
     "r_st7_64": k0("store", nl=7, flags=" sc1", woff=64<<20),
     "r_load14": k0("load", nl=14),
    }
    for n, t in c.items():
        open(n + ".s", "w").write(build(t, amp=8))
    open("r_amp0.s", "w").write(build(k0("load", nl=1), amp=0))
    open("v2_w64.s", "w").write(gen_v2.gen())
```

```python
import sys
from ab import *

M, N, K = 2048, 3584, 1024
BM, BN, BK = 128, 224, 64
NSTEP = K // BK
A_SZ = BM * BK * 2
B_SZ = BN * BK * 2
STAGE = A_SZ + B_SZ
NS = 3
LDS = NS * STAGE
WSB = 16 * 16 * B_SZ
STAMP_OFF = 8 << 20
WOFF = 0

def srd(a, d, lo, hi, size):
    a(f"s_mov_b32 s{d}, s{lo}\ns_mov_b32 s{d+1}, s{hi}\ns_mov_b32 s{d+2}, {size}\ns_mov_b32 s{d+3}, 0x00020000")

def kd(name, nvgpr, nsgpr):
    accum = (nvgpr + 3) // 4 * 4
    return f""".p2align 6
.amdhsa_kernel {name}
  .amdhsa_next_free_vgpr {nvgpr}
  .amdhsa_next_free_sgpr {nsgpr}
  .amdhsa_accum_offset {accum}
  .amdhsa_group_segment_fixed_size 0
  .amdhsa_kernarg_size 56
  .amdhsa_user_sgpr_count 2
  .amdhsa_user_sgpr_kernarg_segment_ptr 1
  .amdhsa_system_sgpr_workgroup_id_x 1
.end_amdhsa_kernel
"""

def gen_k1(ntQ="", stW=" sc1", warmA=True, col=True):
    a = Asm()
    a(f"""
    s_cmp_ge_u32 s2, 256
    s_cbranch_scc1 K1_end
    s_load_dwordx4 s[4:7], s[0:1], 0
    s_load_dwordx4 s[16:19], s[0:1], 16
    s_load_dwordx2 s[20:21], s[0:1], 48
    v_lshrrev_b32 v1, 6, v0
    v_and_b32 v2, 63, v0
    s_and_b32 s28, s2, 15          ; nt
    v_readfirstlane_b32 s3, v1
    s_lshr_b32 s29, s2, 4          ; kstep
    """)
    if col:
        a("""
        s_and_b32 s28, s2, 7
        s_lshl_b32 s28, s28, 1
        s_bfe_u32 s30, s2, 0x10003
        s_add_u32 s28, s28, s30
        """)
    a(f"""
    s_lshl_b32 s30, s29, 3
    s_add_u32 s30, s30, s3
    s_mul_i32 s31, s30, {8*14336}
    s_mul_i32 s32, s28, 896
    s_add_u32 s31, s31, s32
    v_lshlrev_b32 v3, 4, v2        ; q*16
    v_cmp_gt_u32 vcc, 56, v2
    v_mov_b32 v9, 0x40000000
    v_lshlrev_b32 v4, 3, v2
    v_cndmask_b32 v3, v9, v3, vcc
    v_cndmask_b32 v4, v9, v4, vcc
    s_mul_i32 s33, s28, 448
    s_waitcnt lgkmcnt(0)
    """)
    srd(a, 12, 6, 7, K*N*4)
    srd(a, 40, 16, 17, N*2)
    srd(a, 44, 18, 19, N*2)
    srd(a, 24, 20, 21, WSB)
    if WOFF: a(f"s_add_u32 s24, s24, {WOFF}\ns_addc_u32 s25, s25, 0")
    RAW = 16; C1 = 8; C2 = 12; PK = 48
    for e in range(8):
        if e: a(f"s_add_u32 s31, s31, 14336")
        a(f"buffer_load_dwordx4 v[{RAW+4*e}:{RAW+4*e+3}], v3, s[12:15], s31 offen{ntQ}")
    a("buffer_load_dwordx2 v[64:65], v4, s[40:43], s33 offen")
    a("buffer_load_dwordx2 v[66:67], v4, s[44:47], s33 offen")
    nw = 0
    if warmA:
        srd(a, 8, 4, 5, M*K*2)
        a("s_lshl_b32 s34, s2, 14\nv_lshlrev_b32 v5, 5, v0")
        a("buffer_load_dwordx4 v[68:71], v5, s[8:11], s34 offen")
        nw = 1
    a(f"""
    s_lshl_b32 s34, s28, 4
    s_add_u32 s34, s34, s29
    s_mul_i32 s34, s34, {B_SZ}
    s_mul_i32 s35, s3, 3584
    s_add_u32 s34, s34, s35
    v_xor_b32 v6, 16, v3
    s_mov_b32 s48, 0x4b800000
    s_waitcnt vmcnt({nw})
    """)
    for i in range(4):
        sreg = 64 + (i >> 1); zreg = 66 + (i >> 1)
        if i & 1:
            a(f"v_and_b32 v72, 0xffff0000, v{sreg}\nv_and_b32 v73, 0xffff0000, v{zreg}")
        else:
            a(f"v_lshlrev_b32 v72, 16, v{sreg}\nv_lshlrev_b32 v73, 16, v{zreg}")
        a(f"v_mul_f32 v{C1+i}, s48, v72")
        a(f"v_mul_f32 v{C2+i}, -v73, v72")
    for i in range(4):
        for k in range(8):
            x = RAW + 4 * k + i
            a(f"v_fma_mix_f32 v{x}, v{x}, v{C1+i}, v{C2+i} op_sel_hi:[1,0,0]")
        for k in range(4):
            x = RAW + 8 * k + i
            a(f"v_cvt_pk_bf16_f32 v{PK+4*i+k}, v{x}, v{x+4}")
        va = 3 if i < 2 else 6
        a(f"buffer_store_dwordx4 v[{PK+4*i}:{PK+4*i+3}], v{va}, s[24:27], s34 offen offset:{896*i}{stW}")
    a("K1_end:")
    a("s_endpgm")
    return a.text()

def gen_k2(rotn=0, stC=" sc1", stamps=False, bar_pos=28, snake=True, flB="", flA="", prio=None, col=True):
    a = Asm()
    a(f"""
    s_cmp_ge_u32 s2, 256
    s_cbranch_scc1 L_end
    """)
    if stamps: a("s_memrealtime s[60:61]\ns_memtime s[64:65]")
    a(f"""
    s_load_dwordx2 s[4:5], s[0:1], 0
    s_load_dwordx2 s[20:21], s[0:1], 32
    s_load_dwordx2 s[6:7], s[0:1], 48
    v_lshrrev_b32 v1, 6, v0     ; wave
    v_and_b32 v2, 63, v0        ; lane
    s_and_b32 s28, s2, 7
    v_readfirstlane_b32 s3, v1
    s_lshr_b32 s29, s2, 3
    s_and_b32 s30, s28, 1
    s_lshl_b32 s30, s30, 3
    s_and_b32 s31, s29, 7
    s_add_u32 s30, s30, s31     ; mt
    s_lshr_b32 s28, s28, 1      ; xn
    s_lshl_b32 s33, s28, 2
    s_lshr_b32 s31, s29, 3
    s_add_u32 s31, s31, s33     ; nt
    """)
    if col:
        a("""
        s_and_b32 s28, s2, 7
        s_lshl_b32 s31, s28, 1
        s_bfe_u32 s30, s2, 0x10003
        s_add_u32 s31, s31, s30
        s_lshr_b32 s30, s2, 4
        """)
    a(f"""
    s_mul_i32 s32, s28, {rotn}
    s_and_b32 s32, s32, 15      ; kidx
    s_cmp_ge_u32 s3, 4
    s_cbranch_scc1 L_prod
    """)
    ACC = 128
    FX = [16, 64]; FW = [32, 80]
    def acc(mi, t): return ACC + (mi * 7 + t) * 4
    a(f"""
    s_and_b32 s40, s3, 1          ; wm
    s_lshr_b32 s41, s3, 1         ; wn
    v_and_b32 v3, 15, v2          ; i
    v_lshrrev_b32 v4, 4, v2       ; g
    v_and_b32 v5, 7, v2
    v_xor_b32 v5, v5, v4
    v_lshlrev_b32 v5, 4, v5
    v_lshlrev_b32 v6, 7, v3
    v_add_u32 v5, v5, v6
    s_lshl_b32 s34, s40, 13
    v_add_u32 v108, s34, v5
    v_xor_b32 v109, 64, v108
    v_and_b32 v5, 3, v2           ; e
    v_mul_u32_u24 v6, 224, v4
    v_mul_u32_u24 v7, 56, v5
    v_add_u32 v6, v6, v7
    v_lshrrev_b32 v7, 2, v3       ; a
    v_lshl_add_u32 v6, v7, 1, v6
    v_lshrrev_b32 v5, 1, v5       ; h
    v_add_u32 v6, v6, v5          ; tb=0: +h
    v_lshlrev_b32 v6, 4, v6
    v_add_u32 v6, {A_SZ}, v6
    s_lshl_b32 s34, s41, 7
    v_add_u32 v110, s34, v6
    v_xor_b32 v111, 16, v110
    s_lshl_b32 s34, s41, 4
    v_xor_b32 v112, s34, v6
    v_add_u32 v112, 768, v112
    """)
    for r in range(112):
        a(f"v_mov_b32 v{ACC+r}, 0")
    a(f"""
    s_mov_b32 s36, 0
    s_mov_b32 s38, {NSTEP-1}
    v_mov_b32 v8, v108
    v_mov_b32 v9, v109
    v_mov_b32 v10, v110
    v_mov_b32 v11, v111
    v_mov_b32 v12, v112
    v_mov_b32 v13, v110
    v_mov_b32 v14, v111
    v_mov_b32 v15, v112
    """)
    if prio is not None: a(f"s_setprio {prio}")
    def reads(f):
        vx = 8 + f; vw = 10 + 3 * f
        r = [f"ds_read_b128 v[{FX[f]}:{FX[f]+3}], v{vx} offset:0"]
        for t in range(7):
            if t < 6: va, off = vw + (t & 1), (t >> 1) * 256
            else: va, off = vw + 2, 0
            r.append(f"ds_read_b128 v[{FW[f]+4*t}:{FW[f]+4*t+3}], v{va} offset:{off + f*14336}")
        for mi in range(1, 4):
            r.append(f"ds_read_b128 v[{FX[f]+4*mi}:{FX[f]+4*mi+3}], v{vx} offset:{2048*mi}")
        return r
    def mfmas(f):
        r = []
        for mi in range(4):
            ts = range(7) if (not snake or mi % 2 == 0) else range(6, -1, -1)
            for t in ts:
                c = acc(mi, t)
                r.append(f"v_mfma_f32_16x16x32_bf16 v[{c}:{c+3}], v[{FW[f]+4*t}:{FW[f]+4*t+3}], v[{FX[f]+4*mi}:{FX[f]+4*mi+3}], v[{c}:{c+3}]")
        return r
    def block(f, rd, extra=None):
        mf = mfmas(f); rd = list(rd)
        for i, m in enumerate(mf):
            a(m)
            if rd: a(rd.pop(0))
            if extra and (i + 1) in extra:
                for x in extra[i + 1]: a(x)
    a("s_barrier")
    if stamps: a("s_memrealtime s[68:69]\ns_memtime s[74:75]")
    for x in reads(0): a(x)
    a("s_waitcnt lgkmcnt(0)")
    a(".p2align 3")
    a("L_cloop:")
    ex = {12: [f"s_add_u32 s36, s36, {STAGE}", f"s_cmp_eq_u32 s36, {NS*STAGE}"], 13: ["s_cselect_b32 s36, 0, s36"],
          14: ["v_add_u32 v8, s36, v108"], 15: ["v_add_u32 v10, s36, v110"], 16: ["v_add_u32 v11, s36, v111"], 17: ["v_add_u32 v12, s36, v112"],
          bar_pos: ["s_waitcnt lgkmcnt(0)", "s_barrier"]}
    block(0, reads(1), ex)
    ex = {12: ["v_add_u32 v9, s36, v109"], 13: ["v_add_u32 v13, s36, v110"], 14: ["v_add_u32 v14, s36, v111"], 15: ["v_add_u32 v15, s36, v112"],
          16: ["s_sub_u32 s38, s38, 1"], 27: ["s_cmp_lg_u32 s38, 0"], 28: ["s_waitcnt lgkmcnt(0)"]}
    block(1, reads(0), ex)
    a("s_cbranch_scc1 L_cloop")
    block(0, reads(1), {28: ["s_waitcnt lgkmcnt(0)", "s_barrier"]})
    exa = {2: ["v_lshrrev_b32 v5, 1, v3"], 3: ["v_and_b32 v5, 3, v5"], 4: ["v_xor_b32 v5, v5, v4"], 5: ["v_lshlrev_b32 v5, 4, v5"],
           6: ["v_mul_u32_u24 v6, 448, v3"], 7: ["v_add_u32 v5, v5, v6"], 8: [f"s_mul_i32 s34, s40, {64*448}"], 9: ["v_add_u32 v5, s34, v5"],
           10: ["s_lshl_b32 s34, s41, 6"], 11: ["v_add_u32 v6, s34, v5"], 12: ["s_lshl_b32 s34, s41, 3"], 13: ["v_add_u32 v7, s34, v5"]}
    block(1, [], exa)
    if stamps: a("s_memrealtime s[70:71]\ns_memtime s[76:77]")
    a("s_nop 1")
    for mi in range(4):
        if mi == 3: a("s_nop 7")
        b = 16 + 16 * mi
        for p in range(3):
            for tb in range(2):
                c = acc(mi, 2 * p + tb)
                a(f"v_cvt_pk_bf16_f32 v{b+4*p+2*tb}, v{c}, v{c+1}")
                a(f"v_cvt_pk_bf16_f32 v{b+4*p+2*tb+1}, v{c+2}, v{c+3}")
            a(f"ds_write_b128 v6, v[{b+4*p}:{b+4*p+3}] offset:{mi*16*448 + p*128}")
        c = acc(mi, 6)
        a(f"v_cvt_pk_bf16_f32 v{b+12}, v{c}, v{c+1}")
        a(f"v_cvt_pk_bf16_f32 v{b+13}, v{c+2}, v{c+3}")
        a(f"ds_write_b64 v7, v[{b+12}:{b+13}] offset:{mi*16*448 + 384}")
    a("s_branch L_store")
    a("L_prod:")
    a(f"""
    s_sub_u32 s40, s3, 4          ; p
    v_lshrrev_b32 v3, 3, v2
    v_and_b32 v4, 7, v2
    v_xor_b32 v4, v4, v3
    v_lshlrev_b32 v4, 4, v4
    s_lshl_b32 s34, s30, 7
    s_lshl_b32 s35, s40, 5
    s_add_u32 s34, s34, s35
    v_add_u32 v3, s34, v3
    v_lshlrev_b32 v3, 11, v3
    v_add_u32 v16, v3, v4
    v_add_u32 v17, {16384-1024}, v16
    v_add_u32 v18, {2*(16384-1024)}, v16
    v_add_u32 v19, {3*(16384-1024)}, v16
    v_lshlrev_b32 v5, 4, v2
    s_mul_i32 s34, s31, {16*B_SZ}
    s_mul_i32 s35, s40, 7168
    s_add_u32 s34, s34, s35
    v_add_u32 v20, s34, v5
    v_add_u32 v21, 4096, v20
    s_lshl_b32 s41, s40, 12
    s_add_u32 s42, s35, {A_SZ}
    s_waitcnt lgkmcnt(0)
    """)
    srd(a, 8, 4, 5, M*K*2)
    srd(a, 12, 6, 7, WSB)
    if WOFF: a(f"s_add_u32 s12, s12, {WOFF}\ns_addc_u32 s13, s13, 0")
    def issue(slot):
        a(f"""
        s_lshl_b32 s34, s32, 7
        s_mul_i32 s35, s32, {B_SZ}
        s_add_u32 m0, s41, {slot}
        s_add_u32 s32, s32, 1
        """)
        for j in range(4):
            a(f"buffer_load_dwordx4 v{16+j}, s[8:11], s34 offen offset:{1024*j}{flA} lds")
        a(f"s_add_u32 m0, s42, {slot}")
        a("s_and_b32 s32, s32, 15")
        for j in range(4):
            a(f"buffer_load_dwordx4 v20, s[12:15], s35 offen offset:{1024*j}{flB} lds")
        a("s_add_u32 m0, m0, 4096")
        a("s_nop 0")
        for j in range(3):
            a(f"buffer_load_dwordx4 v21, s[12:15], s35 offen offset:{1024*j}{flB} lds")
    issue("0")
    issue(str(STAGE))
    a("s_waitcnt vmcnt(11)")
    a("s_barrier")
    a(f"s_mov_b32 s36, {2*STAGE}")
    a(f"s_mov_b32 s38, {NSTEP-2}")
    a(".p2align 3")
    a("L_ploop:")
    issue("s36")
    a(f"""
    s_add_u32 s36, s36, {STAGE}
    s_cmp_eq_u32 s36, {NS*STAGE}
    s_cselect_b32 s36, 0, s36
    s_sub_u32 s38, s38, 1
    s_cmp_lg_u32 s38, 0
    s_waitcnt vmcnt(11)
    s_barrier
    s_cbranch_scc1 L_ploop
    s_waitcnt vmcnt(0)
    s_barrier
    s_barrier
    """)
    a("L_store:")
    a(f"""
    v_and_b32 v3, 31, v2          ; c
    v_lshrrev_b32 v4, 5, v2
    s_lshl_b32 s34, s3, 4
    v_add_u32 v4, s34, v4
    v_mul_u32_u24 v5, 448, v4
    v_lshlrev_b32 v6, 4, v3
    v_add_u32 v8, v5, v6          ; variant 0
    v_xor_b32 v7, 16, v6
    v_add_u32 v9, v5, v7
    v_xor_b32 v7, 32, v6
    v_add_u32 v10, v5, v7
    v_xor_b32 v7, 48, v6
    v_add_u32 v11, v5, v7
    s_lshl_b32 s34, s30, 7
    v_add_u32 v4, s34, v4
    v_mul_u32_u24 v4, 7168, v4
    s_mul_i32 s35, s31, 448
    v_add3_u32 v12, v4, v6, s35
    v_cmp_gt_u32 vcc, 28, v3
    """)
    srd(a, 24, 20, 21, M*N*2)
    a("""
    s_waitcnt lgkmcnt(0)
    s_barrier
    s_and_b64 exec, exec, vcc
    """)
    for i in range(8):
        a(f"ds_read_b128 v[{16+4*i}:{19+4*i}], v{8+(i&3)} offset:{i*896}")
    for i in range(8):
        a(f"s_mov_b32 s34, {i*2*7168}")
        a(f"s_waitcnt lgkmcnt({7-i})")
        a(f"buffer_store_dwordx4 v[{16+4*i}:{19+4*i}], v12, s[24:27], s34 offen{stC}")
    if stamps:
        a(f"""
        s_memrealtime s[72:73]
        s_waitcnt vmcnt(0)
        s_memrealtime s[62:63]
        s_memtime s[66:67]
        s_waitcnt lgkmcnt(0)
        s_mov_b64 exec, -1
        s_sub_u32 s74, s76, s74
        s_mov_b32 s75, 0
        s_cmp_lg_u32 s3, 0
        s_cbranch_scc1 L_end
        """)
        for i in range(16):
            a(f"v_mov_b32 v{20+i}, s{60+i}")
        a(f"""
        s_lshl_b32 s34, s2, 6
        s_add_u32 s34, s34, {STAMP_OFF}
        v_mov_b32 v36, s34
        v_cmp_eq_u32 vcc, 0, v2
        s_and_saveexec_b64 s[40:41], vcc
        global_store_dwordx4 v36, v[20:23], s[6:7]
        global_store_dwordx4 v36, v[24:27], s[6:7] offset:16
        global_store_dwordx4 v36, v[28:31], s[6:7] offset:32
        global_store_dwordx4 v36, v[32:35], s[6:7] offset:48
        """)
    a("L_end:")
    a("s_endpgm")
    return a.text()

def gen(k1={}, k2={}):
    s = HEADER
    s += f"; @launch kernel=dq_kernel grid=(256,1,1) block=(512,1,1) lds=0\n"
    s += f"; @launch kernel={KN} grid=(256,1,1) block=(512,1,1) lds={LDS}\n"
    s += '.amdgcn_target "amdgcn-amd-amdhsa--gfx950"\n.text\n'
    s += f".globl dq_kernel\n.p2align 8\n.type dq_kernel,@function\ndq_kernel:\n" + gen_k1(**k1)
    s += f".globl {KN}\n.p2align 8\n.type {KN},@function\n{KN}:\n" + gen_k2(**k2)
    s += '.section .rodata,"a"\n' + kd("dq_kernel", 80, 64) + kd(KN, 240, 96)
    return s

if __name__ == "__main__":
    cfgs = {
      "v2_st_84": dict(k1=dict(col=False), k2=dict(stamps=True, col=False)),
      "v2_st": dict(k2=dict(stamps=True)),
      "v2_st_rot2": dict(k2=dict(stamps=True, rotn=2)),
      "v2_st_nowarm_rot2": dict(k1=dict(warmA=False), k2=dict(stamps=True, rotn=2)),
      "v2_st_plainW": dict(k1=dict(stW=""), k2=dict(stamps=True)),
    }
    for n, c in cfgs.items():
        open(f"{n}.s", "w").write(gen(**c))
    print(" ".join(f"work/{n}.s" for n in cfgs))
    open("v2.s", "w").write(gen())

    open("v2c.s", "w").write(gen())
    open("v2c_rot2.s", "w").write(gen(k2=dict(rotn=2)))
    open("v2c_nowarm_rot2.s", "w").write(gen(k1=dict(warmA=False), k2=dict(rotn=2)))
    open("v2c_plainW.s", "w").write(gen(k1=dict(stW="")))
    open("v2c_plainW_nowarm_rot2.s", "w").write(gen(k1=dict(stW="", warmA=False), k2=dict(rotn=2)))
    open("v2c_ntC.s", "w").write(gen(k2=dict(stC=" nt")))
```

```python
import gen_v2
def probe(txt, hi, lo, amp=4, neg=False):
    key = "    s_sub_u32 s74, s76, s74\n"
    code = f"""    s_cmp_ge_u32 s3, 4
    s_cbranch_scc1 L_end
    s_sub_u32 s88, s{hi}, s{lo}
    s_mul_i32 s88, s88, {amp}
"""
    if neg: code += "    s_min_u32 s88, s88, 8000\n    s_sub_u32 s88, 8000, s88\n"
    code += f"""    s_add_u32 s88, s88, 4000
    s_min_u32 s88, s88, 30000
L_spin:
    s_memrealtime s[82:83]
    s_waitcnt lgkmcnt(0)
    s_sub_u32 s82, s82, s60
    s_cmp_lt_u32 s82, s88
    s_cbranch_scc1 L_spin
    s_branch L_end
"""
    assert key in txt
    return txt.replace(key, code + key, 1)
if __name__ == "__main__":
    v = {"base": dict(k2=dict(stamps=True)), "nw": dict(k1=dict(warmA=False), k2=dict(stamps=True, rotn=2))}
    for n, k in v.items():
        t = gen_v2.gen(**k)
        open(f"g_{n}_zero.s", "w").write(probe(t, 60, 60))
        open(f"g_{n}_start.s", "w").write(probe(t, 68, 60))
        open(f"g_{n}_loop.s", "w").write(probe(t, 70, 68))
        open(f"g_{n}_loopneg.s", "w").write(probe(t, 70, 68, neg=True))
        open(f"g_{n}_tail.s", "w").write(probe(t, 62, 70))
```

```python
import gen_v2
MK = 10 << 20
def probe(txt, hi, lo, mode, amp=4, wsp=6):
    key = "    s_sub_u32 s74, s76, s74\n"
    code = f"""    s_cmp_ge_u32 s3, 4
    s_cbranch_scc1 L_end
    s_sub_u32 s88, s{hi}, s{lo}
    s_mul_i32 s88, s88, {amp}
    s_add_u32 s88, s88, 4000
    s_min_u32 s88, s88, 30000
    s_add_u32 s84, s{wsp}, {MK}
    s_addc_u32 s85, s{wsp+1}, 0
    s_lshl_b32 s86, s2, 2
    s_add_u32 s86, s86, s3
    s_lshl_b32 s86, s86, 2
    s_load_dword s87, s[84:85], s86
    s_waitcnt lgkmcnt(0)
    s_cmp_eq_u32 s87, 0x5a17c3e9
    s_cbranch_scc{1 if mode == 'cold' else 0} L_nospin
L_spin:
    s_memrealtime s[82:83]
    s_waitcnt lgkmcnt(0)
    s_sub_u32 s82, s82, s60
    s_cmp_lt_u32 s82, s88
    s_cbranch_scc1 L_spin
L_nospin:
    v_mov_b32 v20, 0x5a17c3e9
    v_mov_b32 v21, s86
    global_store_dword v21, v20, s[84:85]
    s_branch L_end
"""
    assert key in txt
    return txt.replace(key, code + key, 1)
if __name__ == "__main__":
    v = {"base": dict(k2=dict(stamps=True)), "nw": dict(k1=dict(warmA=False), k2=dict(stamps=True, rotn=2))}
    for n, k in v.items():
        t = gen_v2.gen(**k)
        for m in ("cold", "warm"):
            open(f"g_{n}_zero_{m}.s", "w").write(probe(t, 60, 60, m))
            open(f"g_{n}_start_{m}.s", "w").write(probe(t, 68, 60, m))
            open(f"g_{n}_loop_{m}.s", "w").write(probe(t, 70, 68, m))
            open(f"g_{n}_tail_{m}.s", "w").write(probe(t, 62, 70, m))
            open(f"g_{n}_all_{m}.s", "w").write(probe(t, 62, 60, m))
```

```python
import importlib, sys
from diag6 import probe
def make(genmod, kw, prefix, items, modes=("cold",), wave=None):
    g = importlib.import_module(genmod)
    t = g.gen(stamps=True, **kw)
    out = []
    for name, hi, lo in items:
        for m in modes:
            x = probe(t, hi, lo, m, amp=4, wsp=22)
            if wave is not None:
                x = x.replace("    s_cmp_ge_u32 s3, 4\n    s_cbranch_scc1 L_end\n    s_sub_u32 s88", f"    s_cmp_lg_u32 s3, {wave}\n    s_cbranch_scc1 L_end\n    s_sub_u32 s88")
            fn = f"{prefix}_{name}_{m}.s"
            open(fn, "w").write(x); out.append("work/" + fn)
    return out
if __name__ == "__main__":
    import json
    o = make("gen_v4", dict(), "z4", [("zero", 60, 60), ("data", 78, 60), ("flag", 80, 60), ("T0", 68, 60), ("loop", 70, 68), ("tail", 62, 70)], wave=0)
    print(json.dumps(o))
```
